```python
import torch

def _softmax(x, axis=-1):
    return torch.softmax(x, dim=axis)
def _gelu(x):
    return torch.nn.functional.gelu(x, approximate="tanh")
def _silu(x):
    return torch.nn.functional.silu(x)
def _sigmoid(x):
    return torch.sigmoid(x)
def _layernorm(x, axis=-1, eps=1e-5):
    m = x.mean(dim=axis, keepdim=True)
    v = x.var(dim=axis, keepdim=True, unbiased=False)
    return (x - m) / torch.sqrt(v + eps)
def _scatter_add(tgt, idx, src, axis=0):
    return tgt.clone().index_add_(axis, idx, src)
def _segment_sum(src, seg, n):
    out = torch.zeros((n,) + src.shape[1:], dtype=src.dtype)
    return out.index_add_(0, seg, src)
def _pad(x, pw):
    flat = tuple(v for pair in reversed(pw) for v in pair)
    return torch.nn.functional.pad(x, flat)

kernel_name = 'gated_mix__spectral_fnet__mha_block__prompt'

def setup_inputs():

    _w = (lambda a: (lambda t: t.to(torch.bfloat16) if t.is_floating_point() else t)(torch.as_tensor(a)))
    def _A_setup():
        B, S, D = 1, 2048, 640
        ns = torch.arange(S)[:, None] * torch.arange(S)[None, :]
        nd = torch.arange(D)[:, None] * torch.arange(D)[None, :]
        Ws_re = torch.cos(-2.0 * torch.pi * ns / S).to(float)
        Ws_im = torch.sin(-2.0 * torch.pi * ns / S).to(float)
        Wd_re = torch.cos(-2.0 * torch.pi * nd / D).to(float)
        Wd_im = torch.sin(-2.0 * torch.pi * nd / D).to(float)
        return {
            "x": _w((lambda *s: torch.randn(*s, dtype=torch.bfloat16) * 0.05)(B, S, D)),
            "dft_seq_re": _w(Ws_re),
            "dft_seq_im": _w(Ws_im),
            "dft_hid_re": _w(Wd_re),
            "dft_hid_im": _w(Wd_im),
        }
    _A_in = _A_setup()

    def _B_setup():
        B, S, D, H = 1, 2048, 640, 32
        return {
            "x": _w((lambda *s: torch.randn(*s, dtype=torch.bfloat16) * 0.05)(B, S, D)),
            "wqkv": _w((lambda *s: torch.randn(*s, dtype=torch.bfloat16) * 1.6)(D, 3 * D)),
            "wo": _w((lambda *s: torch.randn(*s, dtype=torch.bfloat16) * 1.6)(D, D)),
        }
    _B_in = _B_setup()

    return {
        "A_x": _A_in["x"],
        "A_dft_seq_re": _A_in["dft_seq_re"],
        "A_dft_seq_im": _A_in["dft_seq_im"],
        "A_dft_hid_re": _A_in["dft_hid_re"],
        "A_dft_hid_im": _A_in["dft_hid_im"],
        "B_x": _B_in["x"],
        "B_wqkv": _B_in["wqkv"],
        "B_wo": _B_in["wo"],
        "gate_w": _w((lambda *s: torch.randn(*s, dtype=torch.bfloat16) * 0.05)(640) * 16.0),
    }

def reference(A_x, A_dft_seq_re, A_dft_seq_im, A_dft_hid_re, A_dft_hid_im, B_x, B_wqkv, B_wo, gate_w):
    def _A_ref(x, dft_seq_re, dft_seq_im, dft_hid_re, dft_hid_im):
        a = torch.einsum("bsd,ed->bse", x, dft_hid_re)
        b = torch.einsum("bsd,ed->bse", x, dft_hid_im)
        y = torch.einsum("ts,bse->bte", dft_seq_re, a) - torch.einsum("ts,bse->bte", dft_seq_im, b)
        return y

    def _B_ref(x, wqkv, wo):
        B, S, D = x.shape
        H = 32
        Dh = D // H
        qkv = (lambda x, *d: x.permute(*d))((x @ wqkv).reshape(B, S, 3, H, Dh), 2, 0, 3, 1, 4)
        q, k, v = qkv[0], qkv[1], qkv[2]
        scores = torch.einsum("bhqd,bhkd->bhqk", q, k) * (Dh ** -0.5)
        p = _softmax(scores, axis=-1)
        o = torch.einsum("bhqk,bhkd->bhqd", p, v)
        return (lambda x, *d: x.permute(*d))(o, 0, 2, 1, 3).reshape(B, S, D) @ wo

    x = A_x
    g = _sigmoid((x * gate_w).sum(-1, keepdims=True))
    a = _A_ref(x, A_dft_seq_re, A_dft_seq_im, A_dft_hid_re, A_dft_hid_im)
    b = _B_ref(x, B_wqkv, B_wo)
    return g * a + (1 - g) * b
```

```python
import re

class Asm:
    def __init__(self):
        self.lines = []
        self.kernels = []
        self._lbl = 0
    def __call__(self, s):
        for ln in s.split("\n"):
            ln = ln.strip()
            if ln:
                self.lines.append(ln)
    def label(self, name):
        self.lines.append(name + ":")
    def newlabel(self, base="L"):
        self._lbl += 1
        return f"{base}_{self._lbl}"
    def comment(self, s):
        self.lines.append("; " + s)
    def nop(self, n):
        while n > 0:
            k = min(n, 16)
            self(f"s_nop {k-1}")
            n -= k
    STAMP = False
    def stamp(self, i):
        if self.STAMP:
            self(f"s_memtime s[{80+2*i}:{81+2*i}]")
    def stamp_flush(self, n, wsptr=26, wave=40, base=64<<20):
        if not self.STAMP: return
        self("s_waitcnt lgkmcnt(0) vmcnt(0)")
        self(f"s_memtime s[{80+2*n}:{81+2*n}]")
        self("s_waitcnt lgkmcnt(0)")
        self("s_mov_b64 exec, 1")
        self("s_lshl_b32 s76, s2, 4")
        self(f"s_add_u32 s76, s76, s{wave}")
        self("s_lshl_b32 s76, s76, 7")
        self(f"s_add_u32 s76, s76, {base}")
        self("v_mov_b32 v0, s76")
        for i in range(n + 1):
            self(f"v_mov_b32 v2, s{80+2*i}")
            self(f"v_mov_b32 v3, s{81+2*i}")
            self(f"global_store_dwordx2 v0, v[2:3], s[{wsptr}:{wsptr+1}] offset:{8*i}")
    def begin_kernel(self, name):
        self.lines.append(f".globl {name}")
        self.lines.append(".p2align 8")
        self.lines.append(f".type {name},@function")
        self.lines.append(f"{name}:")
    def text(self):
        out = []
        for ln in self.lines:
            if ln.endswith(":") or ln.startswith("."):
                out.append(ln)
            else:
                out.append("  " + ln)
        return "\n".join(out) + "\n"

def vr(base, n=1):
    return f"v{base}" if n == 1 else f"v[{base}:{base+n-1}]"
def ar(base, n=1):
    return f"a{base}" if n == 1 else f"a[{base}:{base+n-1}]"
def sr(base, n=1):
    return f"s{base}" if n == 1 else f"s[{base}:{base+n-1}]"

_REG = re.compile(r"\b([vas])\[(\d+):(\d+)\]|\b([vas])(\d+)\b|\b(vcc|exec|m0|scc)\b")
def regs_of(tok):
    res = set()
    for m in _REG.finditer(tok):
        if m.group(1):
            for i in range(int(m.group(2)), int(m.group(3)) + 1):
                res.add(m.group(1) + str(i))
        elif m.group(4):
            res.add(m.group(4) + m.group(5))
        else:
            res.add(m.group(6))
    return res

TRANS = ("v_exp_f32", "v_log_f32", "v_rcp_f32", "v_rsq_f32", "v_sqrt_f32", "v_sin_f32", "v_cos_f32", "v_rcp_iflag_f32", "v_exp_f16")

class Ins:
    def __init__(self, text, idx):
        self.text = text; self.idx = idx
        t = text.split(";")[0].strip()
        parts = t.split(None, 1)
        self.mn = parts[0]
        ops = []
        if len(parts) > 1:
            depth = 0; cur = ""
            for ch in parts[1]:
                if ch == "[": depth += 1
                if ch == "]": depth -= 1
                if ch == "," and depth == 0:
                    ops.append(cur.strip()); cur = ""
                else:
                    cur += ch
            ops.append(cur.strip())
        self.ops = ops
        mn = self.mn
        self.w = set(); self.r = set()
        self.kind = "other"
        self.srcC = set(); self.srcAB = set()
        allr = [regs_of(o) for o in ops]
        def rd(lst):
            for s in lst: self.r |= s
        if mn.startswith("v_mfma"):
            self.kind = "mfma"
            self.w = allr[0]; rd(allr[1:]); self.srcC = allr[3]; self.srcAB = allr[1] | allr[2]
            self.passes = 8 if "32x32x16" in mn or "32x32x8" in mn else 4
        elif mn.startswith("v_cmp"):
            self.kind = "valu"; self.w = allr[0]; rd(allr[1:])
            if mn.startswith("v_cmpx"): self.w |= {"exec"}
        elif mn.startswith("v_permlane"):
            self.kind = "valu"; self.w = allr[0] | allr[1]; rd(allr)
        elif mn.startswith("v_"):
            self.kind = "valu"; self.w = set(allr[0]); rd(allr[1:])
            if mn.startswith(("v_fmac", "v_pk_fmac", "v_dot2c", "v_mac")) or "UNUSED_PRESERVE" in t: self.r |= allr[0]
            if mn.startswith(("v_add_co", "v_sub_co", "v_addc_co", "v_subb_co", "v_mad_u64", "v_div_scale")):
                self.w |= allr[1]; self.r -= (allr[1] - set().union(*allr[2:]))
            if mn.startswith("v_cndmask") and len(ops) == 3: self.r |= {"vcc"}
        elif mn.startswith("ds_read") or mn.startswith("ds_bpermute") or mn.startswith("ds_swizzle") or mn.startswith("ds_permute"):
            self.kind = "lds"; self.w = allr[0]; rd(allr[1:])
        elif mn.startswith("ds_"):
            self.kind = "lds"; rd(allr)
        elif mn.startswith(("buffer_load", "global_load")):
            self.kind = "vmem"
            if " lds" in t or "_lds_" in mn:
                rd(allr); self.r |= {"m0"}; self.ldsdma = True
            else:
                self.w = allr[0]; rd(allr[1:])
        elif mn.startswith(("buffer_store", "global_store", "buffer_atomic", "global_atomic")):
            self.kind = "vmem"; rd(allr); self.store = True
            self.data = allr[0] if mn.startswith("buffer") else allr[1]
            self.wide = ("x4" in mn or "x3" in mn)
        elif mn.startswith("s_"):
            self.kind = "salu"
            if mn.startswith(("s_cmp", "s_cbranch", "s_branch", "s_waitcnt", "s_barrier", "s_nop", "s_endpgm", "s_setprio", "s_sleep", "s_bitcmp")):
                rd(allr)
            else:
                if allr: self.w = allr[0]; rd(allr[1:])
                if "saveexec" in mn: self.w |= {"exec"}
        self.ws = 1
        if mn == "s_nop": self.ws = int(ops[0], 0) + 1

def build_trace(lines):
    ins = []; labels = {}
    for i, ln in enumerate(lines):
        if ln.endswith(":"):
            labels[ln[:-1]] = len(ins)
        elif ln.startswith((".", ";")):
            if ln.startswith(".globl"):
                ins.append(None)
        else:
            ins.append(Ins(ln, i))
    traces = []
    traces.append(ins)
    for p, x in enumerate(ins):
        if x is None: continue
        if x.mn.startswith(("s_cbranch", "s_branch")):
            tgt = labels.get(x.ops[0])
            if tgt is None: continue
            pre = ins[max(0, p - 40): p + 1]
            k = 0
            for q in range(len(pre) - 2, -1, -1):
                if pre[q] is None or pre[q].mn in ("s_branch", "s_endpgm"):
                    k = q + 1; break
            pre = pre[k:]
            post = []
            for y in ins[tgt: tgt + 40]:
                if y is None: break
                post.append(y)
                if y.mn in ("s_branch", "s_endpgm"): break
            traces.append(pre + post)
    return traces

def check(lines):
    problems = set()
    for tr in build_trace(lines):
        n = len(tr)
        for i, c in enumerate(tr):
            if c is None: continue
            dist = 0
            for k in range(i - 1, max(-1, i - 24), -1):
                p = tr[k]
                if p is None or p.mn in ("s_branch", "s_endpgm") and k != i - 1 and tr is not None and False: break
                if p is None: break
                if p.mn in ("s_endpgm",): break
                need = 0; why = ""
                pw = p.w
                if p.kind == "valu":
                    vw = {x for x in pw if x[0] in "va" and x != "vcc"}
                    sw = {x for x in pw if x[0] == "s" or x == "vcc"}
                    if c.kind == "mfma" and vw & c.r: need, why = 2, "VALU->MFMA operand"
                    if c.mn.startswith(("v_readfirstlane", "v_readlane")) and vw & c.r: need, why = max(need, 1), "VALU->readlane"
                    if c.mn.startswith("v_permlane") and vw & c.r: need, why = max(need, 2), "VALU->permlane"
                    if ("dpp" in c.text or "row_" in c.text or "quad_perm" in c.text) and vw & c.r: need, why = max(need, 2), "VALU->DPP"
                    if p.mn in TRANS and c.kind == "valu" and c.mn not in TRANS and vw & c.r: need, why = max(need, 1), "trans->VALU"
                    if p.mn in TRANS and c.kind == "valu" and c.mn in TRANS and vw & c.r: need, why = max(need, 1), "trans->trans(cons.)"
                    if ("sdwa" in p.mn or "op_sel" in p.text) and c.kind == "valu" and vw & (c.r | c.w): need, why = max(need, 1), "opsel/sdwa->VALU"
                    if c.kind == "vmem" and sw & c.r: need, why = max(need, 5), "VALU sgpr->VMEM"
                    if c.kind == "valu" and sw & c.r: need, why = max(need, 4 if c.mn.startswith(("v_readlane", "v_writelane")) else 2), "VALU sgpr->VALU"
                    if "exec" in pw and c.kind == "mfma": need, why = max(need, 4), "VALU exec->MFMA"
                    if "exec" in pw and c.mn.startswith(("v_readlane", "v_readfirstlane", "v_writelane", "v_permlane")): need, why = max(need, 4), "VALU exec->lane op"
                if p.kind == "mfma":
                    big = 12 if p.passes == 8 else 8
                    if c.kind == "mfma":
                        if pw & c.srcAB: need, why = big, "MFMA D->MFMA A/B"
                        elif pw & c.srcC and (pw != c.srcC or c.passes != p.passes): need, why = big - 2, "MFMA D->MFMA C overlap"
                        elif pw & c.w and not (pw == c.srcC): need, why = big - 2, "MFMA D->MFMA D WAW(cons.)"
                    elif c.kind in ("valu", "vmem", "lds"):
                        if pw & (c.r | c.w): need, why = big, "MFMA D->VALU/mem"
                    if c.kind == "valu" and p.srcC & c.w: need, why = max(need, 7 if p.passes == 8 else 3), "MFMA C WAR"
                if p.kind == "salu" and "m0" in pw and getattr(c, "ldsdma", False): need, why = max(need, 1), "m0->LDS DMA"
                if getattr(p, "store", False) and p.wide and p.data & c.w: need, why = max(need, 2 if c.kind == "valu" else 1), "store data WAR"
                if need > dist:
                    problems.add((c.idx, p.idx, f"{why}: need {need} have {dist}: [{p.text}] -> [{c.text}]"))
                dist += p.ws
                if dist >= 20: break
    return sorted(problems)

def kd(name, nv, ns, accum=None):
    if accum is None: accum = min(256, (nv + 3) // 4 * 4)
    return f""".p2align 6
.amdhsa_kernel {name}
  .amdhsa_next_free_vgpr {nv}
  .amdhsa_next_free_sgpr {ns}
  .amdhsa_accum_offset {accum}
  .amdhsa_group_segment_fixed_size 0
  .amdhsa_kernarg_size 96
  .amdhsa_user_sgpr_count 2
  .amdhsa_user_sgpr_kernarg_segment_ptr 1
  .amdhsa_system_sgpr_workgroup_id_x 1
.end_amdhsa_kernel
"""
```

```python
from asmlib import *
from layout import *

SLOT = 45056
NSLOT = 3
LDS_A = SLOT * NSLOT
sX = 28; sW = 32; sWS = 36
sWAVE = 40; sRT = 41; sCT = 42; sCB = 43; sT0 = 44; sT1 = 45; sT2 = 46; sT3 = 47
sCUR = 48; sDELTA = 49; sCNT = 50; sXOFF = 51; sWOFF = 52; sLX = 53; sLW = 54; sWHICH = 55
sSC = 56
sSOFF = 60
vLANE = 2; vXA = 4; vWA = 8; vT = 12
vEA = 16
vF = 44
vACC = 108

def common_prologue(a, endlabel, nwg=256):
    a.stamp(0)
    a(f"s_cmp_ge_u32 s2, {nwg}")
    a(f"s_cbranch_scc1 {endlabel}")
    a("s_load_dwordx16 s[4:19], s[0:1], 0")
    a("s_load_dwordx8 s[20:27], s[0:1], 64")
    a("v_lshrrev_b32 v1, 6, v0")
    a(f"v_and_b32 v{vLANE}, 63, v0")
    a(f"v_readfirstlane_b32 s{sWAVE}, v1")

def srd(a, d, p, nbytes, add=0):
    if add:
        a(f"s_add_u32 s{d}, s{p}, {add}")
        a(f"s_addc_u32 s{d+1}, s{p+1}, 0")
        a(f"s_and_b32 s{d+1}, s{d+1}, 0xffff")
    else:
        a(f"s_mov_b32 s{d}, s{p}")
        a(f"s_and_b32 s{d+1}, s{p+1}, 0xffff")
    a(f"s_mov_b32 s{d+2}, {nbytes}")
    a(f"s_mov_b32 s{d+3}, 0x20000")

def rotate_slot(a):
    a(f"s_mov_b32 s{sDELTA}, s{sCUR}")
    a(f"s_add_u32 s{sCUR}, s{sCUR}, {SLOT}")
    a(f"s_cmp_eq_u32 s{sCUR}, {SLOT*NSLOT}")
    a(f"s_cselect_b32 s{sCUR}, 0, s{sCUR}")
    a(f"s_sub_u32 s{sDELTA}, s{sCUR}, s{sDELTA}")

def loader(a, name, tr, nb, endlabel):
    a.label(name)
    n = 4 + nb
    vX = 16; vW = 24
    a(f"s_sub_u32 s{sT0}, s{sWAVE}, 4")
    a(f"v_lshrrev_b32 v3, 3, v{vLANE}")
    a(f"v_and_b32 v4, 7, v{vLANE}")
    def rowoff(dst, rowreg):
        a(f"v_lshrrev_b32 v6, 1, v{rowreg}")
        a("v_and_b32 v6, 7, v6")
        a("v_xor_b32 v6, v6, v4")
        a("v_lshlrev_b32 v6, 4, v6")
        a(f"v_mul_u32_u24 v7, 1280, v{rowreg}")
        a(f"v_add_u32 v{dst}, v7, v6")
    for i in range(4):
        a(f"v_add_u32 v5, {8*i}, v3")
        rowoff(vX + i, 5)
    a(f"s_lshl_b32 s{sT1}, s{sRT}, 2")
    a(f"s_add_u32 s{sT1}, s{sT1}, s{sT0}")
    a(f"s_mul_i32 s{sXOFF}, s{sT1}, {32*1280}")
    a(f"s_lshl_b32 s{sLX}, s{sT0}, 12")
    a(f"s_mul_i32 s{sT2}, s{sT0}, {nb}")
    a(f"s_lshl_b32 s{sLW}, s{sT2}, 10")
    a(f"s_add_u32 s{sLW}, s{sLW}, 16384")
    if not tr:
        a(f"s_lshl_b32 s{sT3}, s{sT2}, 3")
        for i in range(nb):
            a(f"v_add_u32 v5, s{sT3}, v3")
            if i: a(f"v_add_u32 v5, {8*i}, v5")
            rowoff(vW + i, 5)
        a(f"s_mul_i32 s{sWOFF}, s{sCB}, {32*1280}")
        wstep = 128
    else:
        q = 4 * nb
        M = -(-65536 // q)
        a(f"s_lshl_b32 s{sT3}, s{sT2}, 6")
        for i in range(nb):
            a(f"v_add_u32 v5, s{sT3}, v{vLANE}")
            if i: a(f"v_add_u32 v5, {64*i}, v5")
            a(f"v_mul_u32_u24 v6, {M}, v5")
            a("v_lshrrev_b32 v6, 16, v6")
            a(f"v_mul_u32_u24 v7, {q}, v6")
            a("v_sub_u32 v7, v5, v7")
            a("v_lshlrev_b32 v7, 4, v7")
            a("v_mul_u32_u24 v6, 3840, v6")
            a(f"v_add_u32 v{vW+i}, v6, v7")
        a(f"s_lshl_b32 s{sWOFF}, s{sCB}, 6")
        wstep = 64 * 3840
    a(f"s_mov_b32 s{sCUR}, 0")
    def issue():
        a(f"s_add_u32 s{sT0}, s{sLX}, s{sCUR}")
        a(f"s_add_u32 s{sT1}, s{sLW}, s{sCUR}")
        for i in range(4):
            a(f"s_add_u32 m0, s{sT0}, {i*1024}")
            a("s_nop 0")
            a(f"buffer_load_dwordx4 v{vX+i}, s[{sX}:{sX+3}], s{sXOFF} offen lds")
        for i in range(nb):
            a(f"s_add_u32 m0, s{sT1}, {i*1024}")
            a("s_nop 0")
            a(f"buffer_load_dwordx4 v{vW+i}, s[{sW}:{sW+3}], s{sWOFF} offen lds")
        a(f"s_add_u32 s{sXOFF}, s{sXOFF}, 128")
        a(f"s_add_u32 s{sWOFF}, s{sWOFF}, {wstep}")
        rotate_slot(a)
    a.stamp(1)
    l0 = a.newlabel(name + "_pre")
    a(f"s_mov_b32 s{sCNT}, 3")
    a.label(l0)
    issue()
    a(f"s_sub_u32 s{sCNT}, s{sCNT}, 1")
    a(f"s_cmp_lg_u32 s{sCNT}, 0")
    a(f"s_cbranch_scc1 {l0}")
    a.stamp(2)
    a(f"s_waitcnt vmcnt({2*n})")
    a.stamp(3)
    a("s_barrier")
    l1 = a.newlabel(name + "_loop")
    a(f"s_mov_b32 s{sCNT}, 7")
    a.label(l1)
    a(f"s_waitcnt vmcnt({n})")
    a("s_barrier")
    issue()
    a(f"s_sub_u32 s{sCNT}, s{sCNT}, 1")
    a(f"s_cmp_lg_u32 s{sCNT}, 0")
    a(f"s_cbranch_scc1 {l1}")
    a(f"s_waitcnt vmcnt({n})")
    a("s_barrier")
    a("s_waitcnt vmcnt(0)")
    a("s_barrier")
    a.stamp(4)
    a.stamp_flush(5)
    a(f"s_branch {endlabel}")

def compute(a, name, kind, nb, endlabel):
    tr = kind != "AB"
    RB = nb * 64
    a.label(name)
    L = vLANE
    a(f"v_and_b32 v12, 31, v{L}")
    a(f"v_lshrrev_b32 v13, 5, v{L}")
    a("v_lshrrev_b32 v14, 1, v12")
    a("v_and_b32 v14, 7, v14")
    a(f"s_lshl_b32 s{sT0}, s{sWAVE}, 12")
    for j in range(4):
        a(f"v_add_u32 v15, {2*j}, v13")
        a("v_xor_b32 v15, v15, v14")
        a("v_lshlrev_b32 v15, 4, v15")
        a("v_lshl_add_u32 v15, v12, 7, v15")
        a(f"v_add_u32 v{vXA+j}, s{sT0}, v15")
        if not tr:
            a(f"v_add_u32 v{vWA+j}, 16384, v15")
    if tr:
        a(f"v_lshrrev_b32 v15, 5, v{L}")
        a("v_lshlrev_b32 v15, 3, v15")
        a(f"v_bfe_u32 v3, v{L}, 2, 2")
        a("v_add_u32 v15, v15, v3")
        a(f"v_mul_u32_u24 v15, {RB}, v15")
        a(f"v_bfe_u32 v3, v{L}, 4, 1")
        a("v_lshl_add_u32 v15, v3, 5, v15")
        a(f"v_and_b32 v3, 3, v{L}")
        a("v_lshl_add_u32 v15, v3, 3, v15")
        a(f"v_add_u32 v{vWA}, 16384, v15")
    naddr = [vXA + j for j in range(4)] + ([vWA] if tr else [vWA + j for j in range(4)])
    a(f"s_lshl_b32 s{sT1}, s{sRT}, 2")
    a(f"s_add_u32 s{sT1}, s{sT1}, s{sWAVE}")
    if kind == "QK":
        a(f"s_mul_i32 s{sSOFF}, s{sT1}, {TILE_B}")
        a(f"s_lshl_b32 s{sT2}, s{sCB}, 3")
        a(f"v_add_u32 v3, s{sT2}, v13")
        a("v_lshlrev_b32 v14, 4, v12")
        a("v_lshlrev_b32 v12, 3, v12")
        a(f"s_mov_b32 s{sT3}, {HSTRIDE}")
        for nbi in range(nb):
            for i in range(4):
                d = vEA + nbi * 4 + i
                a(f"v_add_u32 v15, {8*nbi+2*i}, v3")
                a("v_mul_u32_u24 v1, 205, v15")
                a("v_lshrrev_b32 v1, 10, v1")
                a("v_mad_i32_i24 v15, v1, -5, v15")
                a(f"v_mul_lo_u32 v{d}, v1, s{sT3}")
                a("v_lshrrev_b32 v1, 1, v15")
                a(f"v_lshl_add_u32 v{d}, v1, 9, v{d}")
                a("v_and_b32 v1, 1, v15")
                a(f"v_lshl_add_u32 v{d}, v1, 3, v{d}")
                a("v_cmp_eq_u32 vcc, 4, v15")
                a("s_nop 1")
                a("v_cndmask_b32 v1, v14, v12, vcc")
                a(f"v_add_u32 v{d}, v{d}, v1")
    elif kind == "V":
        a(f"s_mul_i32 s{sSOFF}, s{sT1}, {TILE_B}")
        a(f"s_add_u32 s{sSOFF}, s{sSOFF}, {32*HSTRIDE + 1280}")
        a(f"s_sub_u32 s{sT2}, s{sCB}, 40")
        a(f"s_lshl_b32 s{sT2}, s{sT2}, 5")
        a(f"v_add_u32 v3, s{sT2}, v12")
        a("v_mul_u32_u24 v14, 320, v13")
        a(f"s_mov_b32 s{sT3}, {HSTRIDE}")
        for nbi in range(nb):
            d = vEA + nbi
            a(f"v_add_u32 v15, {32*nbi}, v3")
            a("v_mul_u32_u24 v1, 3277, v15")
            a("v_lshrrev_b32 v1, 16, v1")
            a("v_mul_u32_u24 v12, 20, v1")
            a("v_sub_u32 v15, v15, v12")
            a(f"v_mul_lo_u32 v{d}, v1, s{sT3}")
            a(f"v_lshl_add_u32 v{d}, v15, 4, v{d}")
            a(f"v_add_u32 v{d}, v{d}, v14")
    else:
        a("v_lshlrev_b32 v14, 4, v12")
        a(f"v_lshl_add_u32 v{vEA}, v13, 3, v14")
        a(f"v_add_u32 v{vEA+1}, 5120, v{vEA}")
        a(f"s_lshl_b32 s{sT2}, s{sWHICH}, 6")
        a(f"s_add_u32 s{sT2}, s{sT2}, s{sT1}")
        a(f"s_mul_i32 s{sT2}, s{sT2}, 10240")
        a(f"s_add_u32 s{sT2}, s{sT2}, {WS_AB}")
        for nbi in range(nb):
            a(f"s_add_u32 s{sT3}, s{sCB}, {nbi}")
            a(f"s_mul_i32 s{sT0}, s{sT3}, 205")
            a(f"s_lshr_b32 s{sT0}, s{sT0}, 10")
            a(f"s_mul_i32 s{sSOFF+nbi}, s{sT0}, {AB_NT - 5*1024}")
            a(f"s_lshl_b32 s{sT3}, s{sT3}, 10")
            a(f"s_add_u32 s{sSOFF+nbi}, s{sSOFF+nbi}, s{sT3}")
            a(f"s_add_u32 s{sSOFF+nbi}, s{sSOFF+nbi}, s{sT2}")
    a(f"s_mov_b32 s{sCUR}, 0")

    def fX(b): return vF + 32 * b
    def fW(b, nbi): return vF + 32 * b + 4 + 4 * nbi
    def reads(j):
        b = j % 2
        r = [[f"ds_read_b128 {vr(fX(b),4)}, v{vXA+j}"]]
        for nbi in range(nb):
            if tr:
                o = 16 * j * RB + nbi * 64
                r.append([f"ds_read_b64_tr_b16 {vr(fW(b,nbi),2)}, v{vWA} offset:{o}",
                          f"ds_read_b64_tr_b16 {vr(fW(b,nbi)+2,2)}, v{vWA} offset:{o+4*RB}"])
            else:
                r.append([f"ds_read_b128 {vr(fW(b,nbi),4)}, v{vWA+j} offset:{nbi*4096}"])
        return r
    def step(j, nxt, first=False, wait=True):
        b = j % 2
        if wait: a("s_waitcnt lgkmcnt(0)")
        groups = []
        if nxt is not None:
            r = reads(nxt)
            groups = [r[0] + r[1] + r[2]] + [sum(r[k:k+2], []) for k in range(3, len(r), 2)]
        for nbi in range(nb):
            acc = vr(vACC + 16 * nbi, 16)
            c = "0" if first else acc
            if kind == "QK":
                a(f"v_mfma_f32_32x32x16_bf16 {acc}, {vr(fW(b,nbi),4)}, {vr(fX(b),4)}, {c}")
            else:
                a(f"v_mfma_f32_32x32x16_bf16 {acc}, {vr(fX(b),4)}, {vr(fW(b,nbi),4)}, {c}")
            if nbi < len(groups):
                for x in groups[nbi]: a(x)
    a.stamp(1)
    a("s_barrier")
    a.stamp(2)
    for g in reads(0):
        for x in g: a(x)
    step(0, 1, first=True); step(1, 2); step(2, 3)
    lp = a.newlabel(name + "_loop")
    a(f"s_mov_b32 s{sCNT}, 9")
    a.label(lp)
    rotate_slot(a)
    a("s_waitcnt lgkmcnt(0)")
    a("s_barrier")
    for r in naddr:
        a(f"v_add_u32 v{r}, s{sDELTA}, v{r}")
    step(3, 0, wait=False); step(0, 1); step(1, 2); step(2, 3)
    a(f"s_sub_u32 s{sCNT}, s{sCNT}, 1")
    a(f"s_cmp_lg_u32 s{sCNT}, 0")
    a(f"s_cbranch_scc1 {lp}")
    step(3, None)
    a.stamp(3)
    a.nop(max(0, 12 - (nb - 1)))
    for nbi in range(nb):
        A = vACC + 16 * nbi
        if nbi == nb - 1 and nb < 3: a.nop(12)
        if kind == "QK":
            a(f"s_add_u32 s{sT0}, s{sCB}, {nbi}")
            a(f"s_cmp_lt_u32 s{sT0}, 20")
            a(f"s_cselect_b32 s{sSC}, {hex(f32bits(QSCALE))}, 1.0")
            a(f"s_mov_b32 s{sSC+1}, s{sSC}")
            for p in range(8):
                a(f"v_pk_mul_f32 {vr(A+2*p,2)}, {vr(A+2*p,2)}, s[{sSC}:{sSC+1}]")
            for i in range(4):
                a(f"v_cvt_pk_bf16_f32 v{A+4*i}, v{A+4*i}, v{A+4*i+1}")
                a(f"v_cvt_pk_bf16_f32 v{A+4*i+1}, v{A+4*i+2}, v{A+4*i+3}")
                a(f"buffer_store_dwordx2 {vr(A+4*i,2)}, v{vEA+nbi*4+i}, s[{sWS}:{sWS+3}], s{sSOFF} offen")
        elif kind == "V":
            for jj in range(2):
                B = A + 8 * jj
                for p in range(4):
                    a(f"v_cvt_pk_bf16_f32 v{B+p}, v{B+2*p}, v{B+2*p+1}")
                a(f"buffer_store_dwordx4 {vr(B,4)}, v{vEA+nbi}, s[{sWS}:{sWS+3}], s{sSOFF} offen offset:{640*jj}")
        else:
            for i in range(4):
                a(f"v_cvt_pk_bf16_f32 v{A+4*i}, v{A+4*i}, v{A+4*i+1}")
                a(f"v_cvt_pk_bf16_f32 v{A+4*i+1}, v{A+4*i+2}, v{A+4*i+3}")
                a(f"buffer_store_dwordx2 {vr(A+4*i,2)}, v{vEA+i//2}, s[{sWS}:{sWS+3}], s{sSOFF+nbi} offen offset:{512*(i%2)}")
    a.stamp(4)
    a.stamp_flush(5)
    a(f"s_branch {endlabel}")

def gen(a, name="proj_kernel"):
    a.begin_kernel(name)
    END = name + "_end"
    common_prologue(a, END)
    a(f"s_and_b32 s{sT0}, s2, 7")
    a(f"s_lshr_b32 s{sT1}, s2, 3")
    a(f"s_lshr_b32 s{sRT}, s{sT0}, 2")
    a(f"s_lshl_b32 s{sRT}, s{sRT}, 3")
    a(f"s_lshr_b32 s{sT2}, s{sT1}, 2")
    a(f"s_add_u32 s{sRT}, s{sRT}, s{sT2}")
    a(f"s_and_b32 s{sCT}, s{sT0}, 3")
    a(f"s_lshl_b32 s{sCT}, s{sCT}, 2")
    a(f"s_and_b32 s{sT2}, s{sT1}, 3")
    a(f"s_add_u32 s{sCT}, s{sCT}, s{sT2}")
    a(f"s_mov_b32 s{sWHICH}, 0")
    a("s_waitcnt lgkmcnt(0)")
    srd(a, sX, 4, S * D * 2)
    srd(a, sWS, 26, WS_END)
    a(f"s_cmp_ge_u32 s{sCT}, 10")
    a(f"s_cbranch_scc1 {name}_ab")
    srd(a, sW, 16, D * 3 * D * 2)
    a(f"s_cmp_ge_u32 s{sCT}, 6")
    a(f"s_cbranch_scc1 {name}_v")
    a(f"s_mul_i32 s{sCB}, s{sCT}, 7")
    a(f"s_cmp_eq_u32 s{sCT}, 5")
    a(f"s_cbranch_scc1 {name}_qk5")
    a(f"s_cmp_ge_u32 s{sWAVE}, 4")
    a(f"s_cbranch_scc1 {name}_ld_tr7")
    a(f"s_branch {name}_c_qk7")
    a.label(f"{name}_qk5")
    a(f"s_cmp_ge_u32 s{sWAVE}, 4")
    a(f"s_cbranch_scc1 {name}_ld_tr5")
    a(f"s_branch {name}_c_qk5")
    a.label(f"{name}_v")
    a(f"s_mul_i32 s{sCB}, s{sCT}, 5")
    a(f"s_add_u32 s{sCB}, s{sCB}, 10")
    a(f"s_cmp_ge_u32 s{sWAVE}, 4")
    a(f"s_cbranch_scc1 {name}_ld_tr5")
    a(f"s_branch {name}_c_v5")
    a.label(f"{name}_ab")
    a(f"s_cmp_ge_u32 s{sCT}, 13")
    a(f"s_cselect_b32 s{sWHICH}, 1, 0")
    a(f"s_cselect_b32 s{sT0}, s12, s10")
    a(f"s_cselect_b32 s{sT1}, s13, s11")
    srd(a, sW, sT0, D * D * 2)
    a(f"s_mul_i32 s{sT2}, s{sWHICH}, 3")
    a(f"s_sub_u32 s{sT2}, s{sCT}, s{sT2}")
    a(f"s_sub_u32 s{sT2}, s{sT2}, 10")
    a(f"s_mul_i32 s{sCB}, s{sT2}, 7")
    a(f"s_cmp_eq_u32 s{sT2}, 2")
    a(f"s_cbranch_scc1 {name}_ab6")
    a(f"s_cmp_ge_u32 s{sWAVE}, 4")
    a(f"s_cbranch_scc1 {name}_ld_row7")
    a(f"s_branch {name}_c_ab7")
    a.label(f"{name}_ab6")
    a(f"s_cmp_ge_u32 s{sWAVE}, 4")
    a(f"s_cbranch_scc1 {name}_ld_row6")
    a(f"s_branch {name}_c_ab6")
    loader(a, f"{name}_ld_tr7", True, 7, END)
    loader(a, f"{name}_ld_tr5", True, 5, END)
    loader(a, f"{name}_ld_row7", False, 7, END)
    loader(a, f"{name}_ld_row6", False, 6, END)
    compute(a, f"{name}_c_qk7", "QK", 7, END)
    compute(a, f"{name}_c_qk5", "QK", 5, END)
    compute(a, f"{name}_c_v5", "V", 5, END)
    compute(a, f"{name}_c_ab7", "AB", 7, END)
    compute(a, f"{name}_c_ab6", "AB", 6, END)
    a.label(END)
    a("s_endpgm")
    return dict(name=name, nv=vACC + 7 * 16, ns=100, grid=256, block=512, lds=LDS_A)
```

```python
S = 2048; D = 640; H = 32; DH = 20
TILE_B = 2560
HSTRIDE = 64 * TILE_B
WS_QKV = 0
WS_AB = 64 * HSTRIDE
AB_NT = 64 * 20480
WS_OF = WS_AB + 4 * AB_NT
WS_WOF = WS_OF + 64 * 40 * 1024
WS_PART = WS_WOF + 20 * 40 * 1024
WS_G = WS_PART + 4 * 64 * 4 * 10240
WS_END = WS_G + 8192
import math, struct
QSCALE = (20 ** -0.5) * math.log2(math.e)
def f32bits(x): return struct.unpack("<I", struct.pack("<f", x))[0]
```

```python
import sys, importlib
from asmlib import *
import kA
HEADER = open("gated_mix__spectral_fnet__mha_block__prompt.s.ref").read().split("; Override")[0]
def build(mods, out):
    a = Asm()
    import os
    a.STAMP = bool(int(os.environ.get('STAMP','0')))
    infos = [m.gen(a) for m in mods]
    probs = check(a.lines)
    for p in probs: print("HAZARD", p[2])
    txt = HEADER
    for i in infos:
        txt += f"; @launch kernel={i['name']} grid=({i['grid']},1,1) block=({i['block']},1,1) lds={i['lds']}\n"
    txt += '.amdgcn_target "amdgcn-amd-amdhsa--gfx950"\n.text\n' + a.text() + '.section .rodata,"a"\n'
    for i in infos:
        txt += kd(i['name'], i['nv'], i['ns'], i.get('accum'))
    open(out, "w").write(txt)
    print("wrote", out, len(txt), "bytes;", len(probs), "hazards")
if __name__ == "__main__":
    mods = [importlib.import_module(m) for m in sys.argv[2:]]
    build(mods, sys.argv[1])
```

```python
import re

class Asm:
    def __init__(self):
        self.lines = []
        self.kernels = []
        self._lbl = 0
    def __call__(self, s):
        for ln in s.split("\n"):
            ln = ln.strip()
            if ln:
                self.lines.append(ln)
    def label(self, name):
        self.lines.append(name + ":")
    def newlabel(self, base="L"):
        self._lbl += 1
        return f"{base}_{self._lbl}"
    def comment(self, s):
        self.lines.append("; " + s)
    def nop(self, n):
        while n > 0:
            k = min(n, 16)
            self(f"s_nop {k-1}")
            n -= k
    STAMP = False
    def stamp(self, i):
        if self.STAMP:
            self(f"s_memtime s[{80+2*i}:{81+2*i}]")
            if i == 0: self("s_memrealtime s[96:97]")
    def stamp_flush(self, n, wsptr=26, wave=40, base=64<<20):
        if not self.STAMP: return
        base += self.kidx * (1 << 20)
        self("s_waitcnt lgkmcnt(0) vmcnt(0)")
        self(f"s_memtime s[{80+2*n}:{81+2*n}]")
        self("s_memrealtime s[98:99]")
        self("s_waitcnt lgkmcnt(0)")
        self("s_mov_b64 exec, 1")
        self("s_lshl_b32 s76, s2, 4")
        self(f"s_add_u32 s76, s76, s{wave}")
        self("s_lshl_b32 s76, s76, 7")
        self(f"s_add_u32 s76, s76, {base}")
        self("v_mov_b32 v0, s76")
        for i in range(n + 1):
            self(f"v_mov_b32 v2, s{80+2*i}")
            self(f"v_mov_b32 v3, s{81+2*i}")
            self(f"global_store_dwordx2 v0, v[2:3], s[{wsptr}:{wsptr+1}] offset:{8*i}")
        for i in range(2):
            self(f"v_mov_b32 v2, s{96+2*i}")
            self(f"v_mov_b32 v3, s{97+2*i}")
            self(f"global_store_dwordx2 v0, v[2:3], s[{wsptr}:{wsptr+1}] offset:{8*(14+i)}")
    kidx = -1
    def begin_kernel(self, name):
        self.kidx += 1
        self.lines.append(f".globl {name}")
        self.lines.append(".p2align 8")
        self.lines.append(f".type {name},@function")
        self.lines.append(f"{name}:")
    def text(self):
        out = []
        for ln in self.lines:
            if ln.endswith(":") or ln.startswith("."):
                out.append(ln)
            else:
                out.append("  " + ln)
        return "\n".join(out) + "\n"

def vr(base, n=1):
    return f"v{base}" if n == 1 else f"v[{base}:{base+n-1}]"
def ar(base, n=1):
    return f"a{base}" if n == 1 else f"a[{base}:{base+n-1}]"
def sr(base, n=1):
    return f"s{base}" if n == 1 else f"s[{base}:{base+n-1}]"

_REG = re.compile(r"\b([vas])\[(\d+):(\d+)\]|\b([vas])(\d+)\b|\b(vcc|exec|m0|scc)\b")
def regs_of(tok):
    res = set()
    for m in _REG.finditer(tok):
        if m.group(1):
            for i in range(int(m.group(2)), int(m.group(3)) + 1):
                res.add(m.group(1) + str(i))
        elif m.group(4):
            res.add(m.group(4) + m.group(5))
        else:
            res.add(m.group(6))
    return res

TRANS = ("v_exp_f32", "v_log_f32", "v_rcp_f32", "v_rsq_f32", "v_sqrt_f32", "v_sin_f32", "v_cos_f32", "v_rcp_iflag_f32", "v_exp_f16")

class Ins:
    def __init__(self, text, idx):
        self.text = text; self.idx = idx
        t = text.split(";")[0].strip()
        parts = t.split(None, 1)
        self.mn = parts[0]
        ops = []
        if len(parts) > 1:
            depth = 0; cur = ""
            for ch in parts[1]:
                if ch == "[": depth += 1
                if ch == "]": depth -= 1
                if ch == "," and depth == 0:
                    ops.append(cur.strip()); cur = ""
                else:
                    cur += ch
            ops.append(cur.strip())
        self.ops = ops
        mn = self.mn
        self.w = set(); self.r = set()
        self.kind = "other"
        self.srcC = set(); self.srcAB = set()
        allr = [regs_of(o) for o in ops]
        def rd(lst):
            for s in lst: self.r |= s
        if mn.startswith("v_mfma"):
            self.kind = "mfma"
            self.w = allr[0]; rd(allr[1:]); self.srcC = allr[3]; self.srcAB = allr[1] | allr[2]
            self.passes = 8 if "32x32x16" in mn or "32x32x8" in mn else 4
        elif mn.startswith("v_cmp"):
            self.kind = "valu"; self.w = allr[0]; rd(allr[1:])
            if mn.startswith("v_cmpx"): self.w |= {"exec"}
        elif mn.startswith("v_permlane"):
            self.kind = "valu"; self.w = allr[0] | allr[1]; rd(allr)
        elif mn.startswith("v_"):
            self.kind = "valu"; self.w = set(allr[0]); rd(allr[1:])
            if mn.startswith(("v_fmac", "v_pk_fmac", "v_dot2c", "v_mac")) or "UNUSED_PRESERVE" in t: self.r |= allr[0]
            if mn.startswith(("v_add_co", "v_sub_co", "v_addc_co", "v_subb_co", "v_mad_u64", "v_div_scale")):
                self.w |= allr[1]; self.r -= (allr[1] - set().union(*allr[2:]))
            if mn.startswith("v_cndmask") and len(ops) == 3: self.r |= {"vcc"}
        elif mn.startswith("ds_read") or mn.startswith("ds_bpermute") or mn.startswith("ds_swizzle") or mn.startswith("ds_permute"):
            self.kind = "lds"; self.w = allr[0]; rd(allr[1:])
        elif mn.startswith("ds_"):
            self.kind = "lds"; rd(allr)
        elif mn.startswith(("buffer_load", "global_load")):
            self.kind = "vmem"
            if " lds" in t or "_lds_" in mn:
                rd(allr); self.r |= {"m0"}; self.ldsdma = True
            else:
                self.w = allr[0]; rd(allr[1:])
        elif mn.startswith(("buffer_store", "global_store", "buffer_atomic", "global_atomic")):
            self.kind = "vmem"; rd(allr); self.store = True
            self.data = allr[0] if mn.startswith("buffer") else allr[1]
            self.wide = ("x4" in mn or "x3" in mn)
        elif mn.startswith("s_"):
            self.kind = "salu"
            if mn.startswith(("s_cmp", "s_cbranch", "s_branch", "s_waitcnt", "s_barrier", "s_nop", "s_endpgm", "s_setprio", "s_sleep", "s_bitcmp")):
                rd(allr)
            else:
                if allr: self.w = allr[0]; rd(allr[1:])
                if "saveexec" in mn: self.w |= {"exec"}
        self.ws = 1
        if mn == "s_nop": self.ws = int(ops[0], 0) + 1

def build_trace(lines):
    ins = []; labels = {}
    for i, ln in enumerate(lines):
        if ln.endswith(":"):
            labels[ln[:-1]] = len(ins)
        elif ln.startswith((".", ";")):
            if ln.startswith(".globl"):
                ins.append(None)
        else:
            ins.append(Ins(ln, i))
    traces = []
    traces.append(ins)
    for p, x in enumerate(ins):
        if x is None: continue
        if x.mn.startswith(("s_cbranch", "s_branch")):
            tgt = labels.get(x.ops[0])
            if tgt is None: continue
            pre = ins[max(0, p - 40): p + 1]
            k = 0
            for q in range(len(pre) - 2, -1, -1):
                if pre[q] is None or pre[q].mn in ("s_branch", "s_endpgm"):
                    k = q + 1; break
            pre = pre[k:]
            post = []
            for y in ins[tgt: tgt + 40]:
                if y is None: break
                post.append(y)
                if y.mn in ("s_branch", "s_endpgm"): break
            traces.append(pre + post)
    return traces

def check(lines):
    problems = set()
    for tr in build_trace(lines):
        n = len(tr)
        for i, c in enumerate(tr):
            if c is None: continue
            dist = 0
            for k in range(i - 1, max(-1, i - 24), -1):
                p = tr[k]
                if p is None or p.mn in ("s_branch", "s_endpgm") and k != i - 1 and tr is not None and False: break
                if p is None: break
                if p.mn in ("s_endpgm",): break
                need = 0; why = ""
                pw = p.w
                if p.kind == "valu":
                    vw = {x for x in pw if x[0] in "va" and x != "vcc"}
                    sw = {x for x in pw if x[0] == "s" or x == "vcc"}
                    if c.kind == "mfma" and vw & c.r: need, why = 2, "VALU->MFMA operand"
                    if c.mn.startswith(("v_readfirstlane", "v_readlane")) and vw & c.r: need, why = max(need, 1), "VALU->readlane"
                    if c.mn.startswith("v_permlane") and vw & c.r: need, why = max(need, 2), "VALU->permlane"
                    if ("dpp" in c.text or "row_" in c.text or "quad_perm" in c.text) and vw & c.r: need, why = max(need, 2), "VALU->DPP"
                    if p.mn in TRANS and c.kind == "valu" and c.mn not in TRANS and vw & c.r: need, why = max(need, 1), "trans->VALU"
                    if p.mn in TRANS and c.kind == "valu" and c.mn in TRANS and vw & c.r: need, why = max(need, 1), "trans->trans(cons.)"
                    if ("sdwa" in p.mn or "op_sel" in p.text) and c.kind == "valu" and vw & (c.r | c.w): need, why = max(need, 1), "opsel/sdwa->VALU"
                    if c.kind == "vmem" and sw & c.r: need, why = max(need, 5), "VALU sgpr->VMEM"
                    if c.kind == "valu" and sw & c.r: need, why = max(need, 4 if c.mn.startswith(("v_readlane", "v_writelane")) else 2), "VALU sgpr->VALU"
                    if "exec" in pw and c.kind == "mfma": need, why = max(need, 4), "VALU exec->MFMA"
                    if "exec" in pw and c.mn.startswith(("v_readlane", "v_readfirstlane", "v_writelane", "v_permlane")): need, why = max(need, 4), "VALU exec->lane op"
                if p.kind == "mfma":
                    big = 12 if p.passes == 8 else 8
                    if c.kind == "mfma":
                        if pw & c.srcAB: need, why = big, "MFMA D->MFMA A/B"
                        elif pw & c.srcC and (pw != c.srcC or c.passes != p.passes): need, why = big - 2, "MFMA D->MFMA C overlap"
                        elif pw & c.w and not (pw == c.srcC): need, why = big - 2, "MFMA D->MFMA D WAW(cons.)"
                    elif c.kind in ("valu", "vmem", "lds"):
                        if pw & (c.r | c.w): need, why = big, "MFMA D->VALU/mem"
                    if c.kind == "valu" and p.srcC & c.w: need, why = max(need, 7 if p.passes == 8 else 3), "MFMA C WAR"
                if p.kind == "salu" and "m0" in pw and getattr(c, "ldsdma", False): need, why = max(need, 1), "m0->LDS DMA"
                if getattr(p, "store", False) and p.wide and p.data & c.w: need, why = max(need, 2 if c.kind == "valu" else 1), "store data WAR"
                if need > dist:
                    problems.add((c.idx, p.idx, f"{why}: need {need} have {dist}: [{p.text}] -> [{c.text}]"))
                dist += p.ws
                if dist >= 20: break
    return sorted(problems)

def kd(name, nv, ns, accum=None):
    if accum is None: accum = min(256, (nv + 3) // 4 * 4)
    return f""".p2align 6
.amdhsa_kernel {name}
  .amdhsa_next_free_vgpr {nv}
  .amdhsa_next_free_sgpr {ns}
  .amdhsa_accum_offset {accum}
  .amdhsa_group_segment_fixed_size 0
  .amdhsa_kernarg_size 96
  .amdhsa_user_sgpr_count 2
  .amdhsa_user_sgpr_kernarg_segment_ptr 1
  .amdhsa_system_sgpr_workgroup_id_x 1
.end_amdhsa_kernel
"""
```
